```python
import torch

def _softmax(x, axis=-1):
    return torch.softmax(x, dim=axis)
def _gelu(x):
    return torch.nn.functional.gelu(x, approximate="tanh")
def _silu(x):
    return torch.nn.functional.silu(x)
def _sigmoid(x):
    return torch.sigmoid(x)
def _layernorm(x, axis=-1, eps=1e-5):
    m = x.mean(dim=axis, keepdim=True)
    v = x.var(dim=axis, keepdim=True, unbiased=False)
    return (x - m) / torch.sqrt(v + eps)
def _scatter_add(tgt, idx, src, axis=0):
    return tgt.clone().index_add_(axis, idx, src)
def _segment_sum(src, seg, n):
    out = torch.zeros((n,) + src.shape[1:], dtype=src.dtype)
    return out.index_add_(0, seg, src)
def _pad(x, pw):
    flat = tuple(v for pair in reversed(pw) for v in pair)
    return torch.nn.functional.pad(x, flat)

kernel_name = 'standalone__paged_block_table_kv_pagedattention__sampling'

def setup_inputs():

    _w = (lambda a: (lambda t: t.to(torch.bfloat16) if t.is_floating_point() else t)(torch.as_tensor(a)))
    B, Hq, Hkv, Sq, Skv, D = 16, 32, 16, 16, 4096, 128
    bs = 16
    nbps = max(1, Skv // bs)
    num_phys = B * nbps + 4
    bt = torch.randperm(num_phys)[: B * nbps].reshape(B, nbps).to(torch.int64)
    cl = (nbps * bs - (torch.arange(1, B + 1, dtype=torch.int64) * 2654435761) % max(1, nbps * bs // 2)).to(torch.int64)
    return {
        "q": _w((lambda *s: torch.randn(*s, dtype=torch.bfloat16) * 0.8)(B, Hq, Sq, D)),
        "k_cache": _w((lambda *s: torch.randn(*s, dtype=torch.bfloat16) * 0.8)(num_phys, bs, Hkv, D)),
        "v_cache": _w((lambda *s: torch.randn(*s, dtype=torch.bfloat16) * 0.05)(num_phys, bs, Hkv, D)),
        "block_table": _w(bt),
        "context_lens": _w(cl),
    }

def reference(q, k_cache, v_cache, block_table, context_lens):
    B, Hq, Sq, D = q.shape
    bs = k_cache.shape[1]
    Hkv = k_cache.shape[2]
    nbps = block_table.shape[1]
    Skv = nbps * bs
    bt = block_table.reshape(-1)
    k = (lambda x, *d: x.permute(*d))(k_cache[bt].reshape(B, Skv, Hkv, D), 0, 2, 1, 3)
    v = (lambda x, *d: x.permute(*d))(v_cache[bt].reshape(B, Skv, Hkv, D), 0, 2, 1, 3)
    g = Hq // Hkv
    qg = q.reshape(B, Hkv, g, Sq, D)
    scores = torch.einsum("bhgqd,bhkd->bhgqk", qg, k) * (D ** -0.5)
    pos = torch.arange(Skv)
    msk = pos[None, :] < context_lens[:, None]
    scores = torch.where(msk[:, None, None, None, :], scores, -1e9)
    p = _softmax(scores, axis=-1)
    out = torch.einsum("bhgqk,bhkd->bhgqd", p, v)
    return out.reshape(B, Hq, Sq, D)
```

```python
import struct, sys, math
import numpy as np

NAME = "standalone__paged_block_table_kv_pagedattention__sampling"

HEADER = """; Kernarg layout for this problem (64 bytes, ptrs only, base s[0:1]):
"""


def fbits(x):
    return "0x%08x" % struct.unpack("<I", struct.pack("<f", float(np.float32(x))))[0]


class Cfg:
    def __init__(self, **kw):
        self.cost = [64] * 16
        for h in (1, 5, 9, 13):
            self.cost[h] = 88
        self.cost[15] = 72
        self.qw = [1.0] * 16
        self.ovh = 96
        self.dmin = 256
        self.diag = False
        self.force_slow = False
        self.nt = True
        self.__dict__.update(kw)


SRD_K, SRD_V, SRD_Q, SRD_BT, SRD_CL, SRD_OUT, SRD_DBG, SRD_WS = 4, 8, 12, 16, 20, 24, 28, 32
KARG = 36
LMASK = 36
CMASK = 44
sW, sB, sH, sE = 52, 53, 54, 55
sTown, sOwn, sClown, sHad = 56, 57, 58, 59
sLt, sLend, sLhoff, sLbt, sLq, sLphase, sLnew = 60, 61, 62, 63, 64, 65, 66
sLown = 67
sPG = 68
sSo0, sSo1 = 70, 71
sCt, sCend, sClo, sCe, sCcl, sCphase, sCfirst, sCT = 72, 73, 74, 75, 76, 77, 78, 79
sSlot, sScale = 80, 81
sPubCnt, sAtmCnt, sPubE, sPubN, sPubT = 82, 83, 84, 85, 86
sT0, sT1, sT2, sT3, sT4, sT5 = 87, 88, 89, 90, 91, 92
EMASK = 94
sRet = 93
sT6 = 3

vLane = 1
vKA = 2
vVA = 10
vDK = 14
vDV = 18
vQoff = 22
vM, vL = 24, 25
vAl = 26
vT0, vT1, vT2, vT3, vT4 = 27, 28, 29, 30, 31
vST, vEN, vP_, vOWN, vRC, vSEG = 32, 36, 40, 44, 48, 52
vT, vCl = 56, 57
vTok = 58
vXr, vStW, vStR = 59, 60, 61
vLane16 = 62
vPoll = 63
vO = 64
vS = 128
vP = 144
vKF = 152
vVF = 184
vQ = 216
vAtm, vOutOff, vRecSt, vMisc = 248, 249, 250, 251
vBigM, vBigL = 252, 253
vF = 254
aQ0, aQ1, aO, aM, aL = 0, 32, 64, 128, 129

RING = 0
BUF0 = 131072
STAT = BUF0 + 16384
MISC = STAT + 1024
LDS_BYTES = 163840
RECSZ = 16640
KV_BYTES = 4100 * 65536
WS_BYTES = 1074790400
BIG = 1 << 30
NEG_BIG = -3.0e38
MASKED_RAW = -float(2 ** 33)
DIAG_OFF = 600 * 1024 * 1024


class A:
    def __init__(self):
        self.l = []
        self.uid = 0

    def __call__(self, s):
        self.l.append("    " + s)

    def lab(self, s):
        self.l.append(s + ":")

    def c(self, s):
        self.l.append("    ; " + s)

    def new(self, base):
        self.uid += 1
        return "L_%s_%d" % (base, self.uid)


def sp(r):
    return "s[%d:%d]" % (r, r + 1)


def srd(r):
    return "s[%d:%d]" % (r, r + 3)


def vr(r, n):
    return "v[%d:%d]" % (r, r + n - 1)


def ar(r, n):
    return "a[%d:%d]" % (r, r + n - 1)


def build(cfg):
    a = A()
    NT = " nt" if cfg.nt else ""
    Csum = sum(cfg.cost)
    W = 16 * sum(cfg.qw)
    lam = [Csum * cfg.qw[h] / W for h in range(16)]
    kap = [Csum * cfg.qw[h] / (W * cfg.cost[h]) for h in range(16)]
    rc = [1.0 / cfg.cost[h] for h in range(16)]
    scale = (128 ** -0.5) * math.log2(math.e)

    def dma_tile_half(srdr, voff, ldsoff):
        for p, so in ((0, sSo0), (1, sSo1)):
            a("s_add_u32 m0, s%d, %d" % (sSlot, ldsoff + p * 4096))
            a("s_nop 0")
            for j in range(4):
                off = " offset:%d" % (j * 1024) if j else ""
                a("buffer_load_dwordx4 v%d, %s, s%d offen%s%s lds" % (voff + j, srd(srdr), so, off, NT))

    def calc_soffs():
        a("s_lshl_b32 s%d, s%d, 16" % (sSo0, sPG))
        a("s_lshl_b32 s%d, s%d, 16" % (sSo1, sPG + 1))
        a("s_add_u32 s%d, s%d, s%d" % (sSo0, sSo0, sLhoff))
        a("s_add_u32 s%d, s%d, s%d" % (sSo1, sSo1, sLhoff))

    def next_bit(maskbase, table, s_e, s_val, lab_none):
        done = a.new("nb_done")
        labs = [a.new("nb%d" % j) for j in range(4)]
        for j in range(4):
            a("s_cmp_lg_u64 %s, 0" % sp(maskbase + 2 * j))
            a("s_cbranch_scc1 %s" % labs[j])
        a("s_branch %s" % lab_none)
        for j in range(4):
            a.lab(labs[j])
            a("s_ff1_i32_b64 s%d, %s" % (s_e, sp(maskbase + 2 * j)))
            a("s_bitset0_b64 %s, s%d" % (sp(maskbase + 2 * j), s_e))
            a("v_readlane_b32 s%d, v%d, s%d" % (s_val, table + j, s_e))
            a("s_add_u32 s%d, s%d, %d" % (s_e, s_e, 64 * j))
            if j < 3:
                a("s_branch %s" % done)
        a.lab(done)

    def read_entry(table, s_dst, s_lane, s_j, tmp):
        a("v_readlane_b32 s%d, v%d, s%d" % (s_dst, table, s_lane))
        for j in range(1, 4):
            a("v_readlane_b32 s%d, v%d, s%d" % (tmp, table + j, s_lane))
            a("s_cmp_eq_u32 s%d, %d" % (s_j, j))
            a("s_cselect_b32 s%d, s%d, s%d" % (s_dst, tmp, s_dst))

    def init_state():
        for i in range(64):
            a("v_mov_b32 v%d, 0" % (vO + i))
        a("v_mov_b32 v%d, %s" % (vM, fbits(NEG_BIG)))
        a("v_mov_b32 v%d, 0" % vL)

    def beta(dst, xsrc, xs_is_sgpr, j, Preg, rcreg, Lreg, P_is_s=False):
        if xs_is_sgpr:
            a("v_sub_u32 v%d, s%d, v%d" % (dst, xsrc, Preg))
            a("v_cvt_f32_i32 v%d, v%d" % (dst, dst))
            a("v_mul_f32 v%d, v%d, v%d" % (dst, dst, rcreg))
            a("v_ceil_f32 v%d, v%d" % (dst, dst))
            a("v_cvt_i32_f32 v%d, v%d" % (dst, dst))
            a("v_med3_i32 v%d, v%d, 0, v%d" % (dst, dst, Lreg))
        else:
            a("v_subrev_u32 v%d, s%d, v%d" % (dst, Preg, xsrc))
            a("v_cvt_f32_i32 v%d, v%d" % (dst, dst))
            a("v_mul_f32 v%d, s%d, v%d" % (dst, rcreg, dst))
            a("v_ceil_f32 v%d, v%d" % (dst, dst))
            a("v_cvt_i32_f32 v%d, v%d" % (dst, dst))
            a("v_med3_i32 v%d, v%d, 0, s%d" % (dst, dst, Lreg))

    vELo, vEHi = vVF, vVF + 4

    def enum_helpers(s_e):
        a("s_and_b32 s%d, s%d, 63" % (sT0, s_e))
        a("s_lshr_b32 s%d, s%d, 6" % (sT1, s_e))
        read_entry(vP_, sT2, sT0, sT1, sT6)
        read_entry(vRC, sT3, sT0, sT1, sT6)
        read_entry(vOWN, sT4, sT0, sT1, sT6)
        a("v_readlane_b32 s%d, v%d, s%d" % (sT5, vT, sT0))
        a("s_sub_u32 s%d, s%d, s%d" % (sT5, sT5, sT4))
        a("s_nop 1")
        for j in range(4):
            beta(vELo + j, vST + j, False, j, sT2, sT3, sT5)
            beta(vEHi + j, vEN + j, False, j, sT2, sT3, sT5)
            a("v_cmp_gt_i32 %s, v%d, v%d" % (sp(EMASK + 2 * j), vEHi + j, vELo + j))
            a("v_add_u32 v%d, s%d, v%d" % (vELo + j, sT4, vELo + j))
        a("s_nop 1")

    vLd = vKF + 16
    vMp, vLp, vFa, vFb, vMn = vS, vS + 1, vS + 2, vS + 3, vS + 4

    def fold(acc, Mreg, Lreg, s_e, s_lo, s_dt):
        a("s_lshl_b32 s%d, s%d, 7" % (sT0, s_e))
        a("s_add_u32 s%d, s%d, s%d" % (sT0, sT0, s_lo))
        a("s_mul_i32 s%d, s%d, %d" % (sT0, sT0, RECSZ))
        a("s_lshl_b32 s%d, s%d, 12" % (sT1, s_dt))
        a("s_add_u32 s%d, s%d, s%d" % (sT1, sT1, sT0))
        a("s_add_u32 s%d, s%d, 16384" % (sT0, sT0))
        a("buffer_load_dword v%d, v%d, %s, s%d offen sc1" % (vMp, vRecSt, srd(SRD_WS), sT0))
        a("buffer_load_dword v%d, v%d, %s, s%d offen offset:128 sc1" % (vLp, vRecSt, srd(SRD_WS), sT0))
        for k in range(4):
            off = " offset:%d" % (k * 1024) if k else ""
            a("buffer_load_dwordx4 %s, v%d, %s, s%d offen%s sc1" % (vr(vLd + 4 * k, 4), vLane16, srd(SRD_WS), sT1, off))
        a("s_waitcnt vmcnt(0)")
        a("v_max_f32 v%d, v%d, v%d" % (vMn, Mreg, vMp))
        a("v_sub_f32 v%d, v%d, v%d" % (vFa, Mreg, vMn))
        a("v_sub_f32 v%d, v%d, v%d" % (vFb, vMp, vMn))
        a("v_exp_f32 v%d, v%d" % (vFa, vFa))
        a("v_exp_f32 v%d, v%d" % (vFb, vFb))
        a("v_mov_b32 v%d, v%d" % (Mreg, vMn))
        a("v_mul_f32 v%d, v%d, v%d" % (Lreg, Lreg, vFa))
        a("v_fmac_f32 v%d, v%d, v%d" % (Lreg, vLp, vFb))
        for i in range(16):
            a("v_mul_f32 v%d, v%d, v%d" % (acc + i, acc + i, vFa))
            a("v_fmac_f32 v%d, v%d, v%d" % (acc + i, vLd + i, vFb))

    def store_out(acc, Lreg, s_e, s_dt):
        a("v_rcp_f32 v%d, v%d" % (vFa, Lreg))
        a("s_and_b32 s%d, s%d, 15" % (sT0, s_e))
        a("s_lshl_b32 s%d, s%d, 17" % (sT0, sT0))
        a("s_lshr_b32 s%d, s%d, 4" % (sT1, s_e))
        a("s_lshl_b32 s%d, s%d, 13" % (sT1, sT1))
        a("s_add_u32 s%d, s%d, s%d" % (sT0, sT0, sT1))
        a("s_lshl_b32 s%d, s%d, 6" % (sT1, s_dt))
        a("s_add_u32 s%d, s%d, s%d" % (sT0, sT0, sT1))
        for i in range(16):
            a("v_mul_f32 v%d, v%d, v%d" % (acc + i, acc + i, vFa))
        for q in range(4):
            a("v_cvt_pk_bf16_f32 v%d, v%d, v%d" % (vLd + 2 * q, acc + 4 * q, acc + 4 * q + 1))
            a("v_cvt_pk_bf16_f32 v%d, v%d, v%d" % (vLd + 2 * q + 1, acc + 4 * q + 2, acc + 4 * q + 3))
        for q in range(4):
            off = " offset:%d" % (q * 16) if q else ""
            a("buffer_store_dwordx2 %s, v%d, %s, s%d offen%s" % (vr(vLd + 2 * q, 2), vOutOff, srd(SRD_OUT), sT0, off))

    def stamp(idx):
        if not cfg.diag:
            return
        a("s_memrealtime %s" % sp(sT1))
        a("s_waitcnt lgkmcnt(0)")
        a("v_mov_b32 v%d, s%d" % (vT0, sT1))
        a("s_lshl_b32 s%d, s2, 2" % sT0)
        a("s_add_u32 s%d, s%d, s%d" % (sT0, sT0, sW))
        a("s_lshl_b32 s%d, s%d, 6" % (sT0, sT0))
        a("s_add_u32 s%d, s%d, %d" % (sT0, sT0, DIAG_OFF + 4 * idx))
        a("s_mov_b64 exec, 1")
        a("buffer_store_dword v%d, off, %s, s%d" % (vT0, srd(SRD_WS), sT0))
        a("s_mov_b64 exec, -1")

    a.l.append(HEADER + "; @launch grid=(256,1,1) block=(256,1,1) lds=%d" % LDS_BYTES)
    a.l.append('.amdgcn_target "amdgcn-amd-amdhsa--gfx950"')
    a.l.append(".text")
    a.l.append(".globl %s_kernel" % NAME)
    a.l.append(".p2align 8")
    a.l.append(".type %s_kernel,@function" % NAME)
    a.lab("%s_kernel" % NAME)
    a("s_cmp_ge_u32 s2, 256")
    a("s_cbranch_scc1 L_exit")
    a("s_load_dwordx16 s[%d:%d], s[0:1], 0" % (KARG, KARG + 15))
    if cfg.diag:
        a("s_memrealtime %s" % sp(EMASK))
    a("v_lshrrev_b32 v%d, 6, v0" % vT0)
    a("v_and_b32 v%d, 63, v0" % vLane)
    a("v_readfirstlane_b32 s%d, v%d" % (sW, vT0))
    a("s_lshr_b32 s%d, s2, 4" % sB)
    a("s_and_b32 s%d, s2, 15" % sH)
    a("s_lshl_b32 s%d, s%d, 4" % (sE, sH))
    a("s_add_u32 s%d, s%d, s%d" % (sE, sE, sB))
    a("s_mov_b32 s%d, %s" % (sScale, fbits(scale)))
    vl15, vG, vHl, vl31, vR, vC = vS, vS + 1, vS + 2, vS + 3, vS + 4, vS + 5
    a("v_and_b32 v%d, 15, v%d" % (vl15, vLane))
    a("v_lshrrev_b32 v%d, 4, v%d" % (vG, vLane))
    a("v_lshrrev_b32 v%d, 5, v%d" % (vHl, vLane))
    a("v_and_b32 v%d, 31, v%d" % (vl31, vLane))
    a("v_lshrrev_b32 v%d, 2, v%d" % (vR, vl15))
    a("v_and_b32 v%d, 3, v%d" % (vC, vLane))
    for j in range(4):
        a("v_add_u32 v%d, %d, v%d" % (vT0, 4 * j, vG))
        a("v_xor_b32 v%d, v%d, v%d" % (vT1, vl15, vT0))
        a("v_lshlrev_b32 v%d, 12, v%d" % (vT2, vT0))
        a("v_lshl_add_u32 v%d, v%d, 4, v%d" % (vDK + j, vT1, vT2))
        a("v_lshlrev_b32 v%d, 2, v%d" % (vT3, vG))
        a("v_xor_b32 v%d, v%d, v%d" % (vT1, vl15, vT3))
        a("v_lshl_add_u32 v%d, v%d, 4, v%d" % (vDV + j, vT1, vT2))
        if j:
            a("v_subrev_u32 v%d, %d, v%d" % (vDK + j, 1024 * j, vDK + j))
            a("v_subrev_u32 v%d, %d, v%d" % (vDV + j, 1024 * j, vDV + j))
    a("v_lshlrev_b32 v%d, 8, v%d" % (vT0, vl31))
    a("v_lshl_add_u32 v%d, v%d, 4, v%d" % (vQoff, vHl, vT0))
    a("v_lshl_add_u32 v%d, v%d, 3, v%d" % (vOutOff, vHl, vT0))
    a("v_lshlrev_b32 v%d, 2, v%d" % (vMisc, vl15))
    a("s_lshl_b32 s%d, s%d, 15" % (sSlot, sW))
    a("s_waitcnt lgkmcnt(0)")
    sizes = [2097152, KV_BYTES, KV_BYTES, 16384, 64, 2097152, 256, WS_BYTES]
    order = [SRD_Q, SRD_K, SRD_V, SRD_BT, SRD_CL, SRD_OUT, SRD_DBG, SRD_WS]
    for i in (3, 4, 0, 1, 2, 5, 6, 7):
        r = order[i]
        a("s_mov_b32 s%d, s%d" % (r, KARG + 2 * i))
        a("s_and_b32 s%d, s%d, 0xffff" % (r + 1, KARG + 2 * i + 1))
        a("s_mov_b32 s%d, %d" % (r + 2, sizes[i]))
        a("s_mov_b32 s%d, 0x20000" % (r + 3))
        if i == 3:
            a("s_lshl_b32 s%d, s%d, 10" % (sLbt, sB))
            a("s_lshl_b32 s%d, s%d, 3" % (sT0, sW))
            a("s_add_u32 s%d, s%d, s%d" % (sT0, sT0, sLbt))
            a("s_buffer_load_dwordx2 %s, %s, s%d" % (sp(sPG), srd(SRD_BT), sT0))
            a("s_buffer_load_dwordx2 %s, %s, s%d offset:32" % (sp(sT3), srd(SRD_BT), sT0))
        if i == 4:
            a("buffer_load_dword v%d, v%d, %s, 0 offen" % (vCl, vMisc, srd(SRD_CL)))
        if i == 0:
            a("s_lshl_b32 s%d, s%d, 17" % (sLq, sB))
            a("s_lshl_b32 s%d, s%d, 13" % (sT1, sH))
            a("s_add_u32 s%d, s%d, s%d" % (sLq, sLq, sT1))
            for ks in range(8):
                off = " offset:%d" % (ks * 32) if ks else ""
                a("buffer_load_dwordx4 %s, v%d, %s, s%d offen%s" % (vr(vQ + 4 * ks, 4), vQoff, srd(SRD_Q), sLq, off))
    a("s_lshl_b32 s%d, s%d, 8" % (sLhoff, sH))
    a("s_waitcnt lgkmcnt(0)")
    calc_soffs()
    dma_tile_half(SRD_K, vDK, 0)
    dma_tile_half(SRD_V, vDV, 8192)
    a("s_mov_b32 s%d, s%d" % (sPG, sT3))
    a("s_mov_b32 s%d, s%d" % (sPG + 1, sT3 + 1))
    calc_soffs()
    dma_tile_half(SRD_K, vDK, 16384)
    dma_tile_half(SRD_V, vDV, 16384 + 8192)
    if cfg.diag:
        a("v_mov_b32 v%d, s%d" % (vT0, EMASK))
        a("s_lshl_b32 s%d, s2, 2" % sT0)
        a("s_add_u32 s%d, s%d, s%d" % (sT0, sT0, sW))
        a("s_lshl_b32 s%d, s%d, 6" % (sT0, sT0))
        a("s_add_u32 s%d, s%d, %d" % (sT0, sT0, DIAG_OFF))
        a("s_getreg_b32 s%d, hwreg(HW_REG_XCC_ID)" % sT1)
        a("v_mov_b32 v%d, s%d" % (vT1, sT1))
        a("s_mov_b64 exec, 1")
        a("buffer_store_dword v%d, off, %s, s%d" % (vT0, srd(SRD_WS), sT0))
        a("buffer_store_dword v%d, off, %s, s%d offset:60" % (vT1, srd(SRD_WS), sT0))
        a("s_mov_b64 exec, -1")
    a("v_lshlrev_b32 v%d, 8, v%d" % (vT0, vl31))
    a("v_add_u32 v%d, s%d, v%d" % (vT0, sSlot, vT0))
    for ks in range(8):
        a("v_or_b32 v%d, %d, v%d" % (vT1, 2 * ks, vHl))
        a("v_xor_b32 v%d, v%d, v%d" % (vT1, vT1, vl15))
        a("v_lshl_add_u32 v%d, v%d, 4, v%d" % (vKA + ks, vT1, vT0))
    a("v_lshl_add_u32 v%d, v%d, 2, v%d" % (vT0, vHl, vR))
    a("v_lshlrev_b32 v%d, 8, v%d" % (vT0, vT0))
    a("v_add_u32 v%d, s%d, v%d" % (vT0, sSlot, vT0))
    a("v_add_u32 v%d, 8192, v%d" % (vT0, vT0))
    a("v_and_b32 v%d, 1, v%d" % (vT1, vG))
    a("v_lshl_add_u32 v%d, v%d, 5, v%d" % (vT0, vT1, vT0))
    a("v_lshl_add_u32 v%d, v%d, 3, v%d" % (vT0, vC, vT0))
    for i in range(4):
        a("s_add_u32 s%d, s%d, %d" % (sT0, sW, i))
        a("s_and_b32 s%d, s%d, 3" % (sT0, sT0))
        a("v_xor_b32 v%d, s%d, v%d" % (vT1, sT0, vR))
        a("v_lshl_add_u32 v%d, v%d, 6, v%d" % (vVA + i, vT1, vT0))
    a("v_lshlrev_b32 v%d, 2, v%d" % (vTok, vHl))
    a("v_lshlrev_b32 v%d, 4, v%d" % (vLane16, vLane))
    a("s_lshl_b32 s%d, s%d, 12" % (sT0, sW))
    a("s_add_u32 s%d, s%d, %d" % (sT0, sT0, BUF0))
    a("v_add_u32 v%d, s%d, v%d" % (vXr, sT0, vLane16))
    a("v_lshlrev_b32 v%d, 3, v%d" % (vStR, vl31))
    a("v_add_u32 v%d, %d, v%d" % (vStR, STAT, vStR))
    a("s_lshl_b32 s%d, s%d, 8" % (sT0, sW))
    a("v_add_u32 v%d, s%d, v%d" % (vStW, sT0, vStR))
    a("v_lshlrev_b32 v%d, 2, v%d" % (vRecSt, vl31))
    a("v_mov_b32 v%d, %d" % (vMisc, MISC))
    a("v_mov_b32 v%d, 0" % vT0)
    a("ds_write_b32 v%d, v%d" % (vMisc, vT0))
    a("v_mov_b32 v%d, 0" % vPoll)
    vKap, vLam, vCo = vKF, vKF + 4, vKF + 8
    for r in range(4):
        m = 0xFFFF << (16 * r)
        a("s_mov_b32 exec_lo, 0x%x" % (m & 0xFFFFFFFF))
        a("s_mov_b32 exec_hi, 0x%x" % (m >> 32))
        for j in range(4):
            h = 4 * j + r
            a("v_mov_b32 v%d, %s" % (vKap + j, fbits(kap[h])))
            a("v_mov_b32 v%d, %s" % (vLam + j, fbits(lam[h])))
            a("v_mov_b32 v%d, %d" % (vCo + j, cfg.cost[h]))
            a("v_mov_b32 v%d, %s" % (vRC + j, fbits(rc[h])))
    a("s_mov_b64 exec, -1")
    a("s_waitcnt vmcnt(%d)" % (42 if cfg.diag else 40))
    a("v_min_i32 v%d, 0x1000, v%d" % (vCl, vCl))
    a("v_add_u32 v%d, 31, v%d" % (vT, vCl))
    a("v_ashrrev_i32 v%d, 5, v%d" % (vT, vT))
    a("v_cmp_lt_i32 vcc, 0, v%d" % vCl)
    a("v_mov_b32 v%d, 0x80" % vT0)
    a("v_max_i32 v%d, 0, v%d" % (vCl, vCl))
    a("v_cndmask_b32 v%d, v%d, v%d, vcc" % (vT, vT0, vT))
    a("v_mov_b32 v%d, v%d" % (vT1, vT))
    a("s_nop 1")
    for sh in (1, 2, 4, 8):
        a("v_add_u32_dpp v%d, v%d, v%d row_shr:%d row_mask:0xf bank_mask:0xf bound_ctrl:0" % (vT1, vT1, vT1, sh))
        a("s_nop 1")
    a("v_readlane_b32 s%d, v%d, 15" % (sT0, vT1))
    a("v_readlane_b32 s%d, v%d, s%d" % (sTown, vT, sB))
    a("v_readlane_b32 s%d, v%d, s%d" % (sClown, vCl, sB))
    a("v_cvt_f32_u32 v%d, s%d" % (vT2, sT0))
    vLf, vSs, vDd, vSi, vDi = vKF + 12, vKF + 16, vKF + 20, vKF + 24, vKF + 28
    a("v_mov_b32 v%d, %d" % (vT3, cfg.dmin))
    for j in range(4):
        a("v_fma_f32 v%d, v%d, v%d, 0.5" % (vT0, vT2, vKap + j))
        a("v_cvt_u32_f32 v%d, v%d" % (vT0, vT0))
        a("v_max_u32 v%d, 8, v%d" % (vT0, vT0))
        a("v_min_u32 v%d, v%d, v%d" % (vOWN + j, vT0, vT))
        a("v_sub_u32 v%d, v%d, v%d" % (vLf + j, vT, vOWN + j))
        a("v_mul_u32_u24 v%d, v%d, v%d" % (vSs + j, vLf + j, vCo + j))
        a("v_mul_f32 v%d, v%d, v%d" % (vT0, vT2, vLam + j))
        a("v_cvt_u32_f32 v%d, v%d" % (vT0, vT0))
        a("v_mul_u32_u24 v%d, v%d, v%d" % (vT1, vT, vCo + j))
        a("v_sub_u32 v%d, v%d, v%d" % (vT0, vT0, vT1))
        a("v_subrev_u32 v%d, %d, v%d" % (vT0, cfg.ovh, vT0))
        a("v_cmp_ge_i32 vcc, v%d, v%d" % (vT0, vT3))
        a("v_mov_b32 v%d, v%d" % (vSi + j, vSs + j))
        a("s_nop 0")
        a("v_cndmask_b32 v%d, 0, v%d, vcc" % (vDd + j, vT0))
        a("v_mov_b32 v%d, v%d" % (vDi + j, vDd + j))
    a("s_nop 1")
    regs = [vSi + j for j in range(4)] + [vDi + j for j in range(4)]
    for sh in (1, 2, 4, 8):
        for r in regs:
            a("v_add_u32_dpp v%d, v%d, v%d row_shr:%d row_mask:0xf bank_mask:0xf bound_ctrl:0" % (r, r, r, sh))
    for r in regs:
        a("v_add_u32_dpp v%d, v%d, v%d row_bcast:15 row_mask:0xa bank_mask:0xf" % (r, r, r))
    for r in regs:
        a("v_add_u32_dpp v%d, v%d, v%d row_bcast:31 row_mask:0xc bank_mask:0xf" % (r, r, r))
    a("s_nop 0")
    cs = [EMASK + i for i in range(4)]
    cd = [EMASK + 4 + i for i in range(4)]
    for j in range(4):
        a("v_readlane_b32 s%d, v%d, 63" % (cs[j], vSi + j))
        a("v_readlane_b32 s%d, v%d, 63" % (cd[j], vDi + j))
    for j in range(1, 4):
        a("s_add_u32 s%d, s%d, s%d" % (cs[j], cs[j], cs[j - 1]))
        a("s_add_u32 s%d, s%d, s%d" % (cd[j], cd[j], cd[j - 1]))
    for j in range(1, 4):
        a("v_add_u32 v%d, s%d, v%d" % (vSi + j, cs[j - 1], vSi + j))
        a("v_add_u32 v%d, s%d, v%d" % (vDi + j, cd[j - 1], vDi + j))
    sSt, sDt = cs[3], cd[3]
    a("v_cvt_f32_u32 v%d, s%d" % (vT0, sDt))
    a("v_cvt_f32_u32 v%d, s%d" % (vT1, sSt))
    a("v_rcp_f32 v%d, v%d" % (vT0, vT0))
    a("v_mov_b32 v%d, %d" % (vT3, BIG))
    a("v_mul_f32 v%d, v%d, v%d" % (vT2, vT0, vT1))
    for j in range(4):
        a("v_sub_u32 v%d, v%d, v%d" % (vP_ + j, vSi + j, vSs + j))
        a("v_sub_u32 v%d, v%d, v%d" % (vT0, vDi + j, vDd + j))
        a("v_cvt_f32_u32 v%d, v%d" % (vT0, vT0))
        a("v_cvt_f32_u32 v%d, v%d" % (vT1, vDi + j))
        a("v_mul_f32 v%d, v%d, v%d" % (vT0, vT0, vT2))
        a("v_mul_f32 v%d, v%d, v%d" % (vT1, vT1, vT2))
        a("v_cvt_u32_f32 v%d, v%d" % (vST + j, vT0))
        a("v_cvt_u32_f32 v%d, v%d" % (vEN + j, vT1))
        a("v_cmp_eq_u32 vcc, s%d, v%d" % (sDt, vDi + j))
        a("s_nop 1")
        a("v_cndmask_b32 v%d, v%d, v%d, vcc" % (vEN + j, vEN + j, vT3))
        a("v_cmp_ne_u32 vcc, 0, v%d" % (vDd + j))
        a("s_nop 1")
        a("v_cndmask_b32 v%d, 0, v%d, vcc" % (vST + j, vST + j))
        a("v_cndmask_b32 v%d, 0, v%d, vcc" % (vEN + j, vEN + j))
    a("s_cmp_lg_u32 s%d, 0" % sDt)
    a("s_cbranch_scc1 L_have_takers")
    for j in range(4):
        a("v_mov_b32 v%d, v%d" % (vOWN + j, vT))
        a("v_mov_b32 v%d, 0" % (vLf + j))
    a.lab("L_have_takers")
    a("s_nop 0")
    a("s_and_b32 s%d, s%d, 63" % (sT0, sE))
    a("s_lshr_b32 s%d, s%d, 6" % (sT1, sE))
    read_entry(vST, sT2, sT0, sT1, sT6)
    read_entry(vEN, sT3, sT0, sT1, sT6)
    read_entry(vOWN, sOwn, sT0, sT1, sT6)
    a("s_sub_u32 s%d, s%d, s%d" % (sLown, sTown, sOwn))
    a("s_nop 1")
    for j in range(4):
        beta(vT0, sT2, True, j, vP_ + j, vRC + j, vLf + j)
        beta(vT1, sT3, True, j, vP_ + j, vRC + j, vLf + j)
        a("v_cmp_gt_i32 %s, v%d, v%d" % (sp(LMASK + 2 * j), vT1, vT0))
        a("v_add_u32 v%d, v%d, v%d" % (vT0, vT0, vOWN + j))
        a("v_add_u32 v%d, v%d, v%d" % (vT1, vT1, vOWN + j))
        a("v_lshl_or_b32 v%d, v%d, 8, v%d" % (vSEG + j, vT1, vT0))
    a("s_nop 1")
    for j in range(4):
        a("s_mov_b64 %s, %s" % (sp(CMASK + 2 * j), sp(LMASK + 2 * j)))
    a("s_or_b64 %s, %s, %s" % (sp(sT1), sp(LMASK), sp(LMASK + 2)))
    a("s_or_b64 %s, %s, %s" % (sp(sT3), sp(LMASK + 4), sp(LMASK + 6)))
    a("s_or_b64 %s, %s, %s" % (sp(sT1), sp(sT1), sp(sT3)))
    a("s_cselect_b32 s%d, 1, 0" % sHad)
    a("s_add_u32 s%d, s%d, 4" % (sLt, sW))
    a("s_mov_b32 s%d, 8" % sLend)
    a("s_mov_b32 s%d, 0" % sLphase)
    a("s_mov_b32 s%d, 0" % sLnew)
    a("s_mov_b32 s%d, s%d" % (sCt, sW))
    a("s_mov_b32 s%d, 8" % sCend)
    a("s_mov_b32 s%d, 0" % sClo)
    a("s_mov_b32 s%d, s%d" % (sCe, sE))
    a("s_mov_b32 s%d, s%d" % (sCcl, sClown))
    a("s_mov_b32 s%d, s%d" % (sCT, sTown))
    a("s_mov_b32 s%d, 0" % sCphase)
    a("s_mov_b32 s%d, 0" % sCfirst)
    a("s_mov_b32 s%d, 0" % sPubCnt)
    a("s_mov_b32 s%d, 0" % sAtmCnt)
    a("s_mov_b32 s%d, 0" % sPubE)
    a("s_mov_b32 s%d, 0" % sPubN)
    a("s_mov_b32 s%d, 0" % sPubT)
    init_state()
    stamp(1)

    a.l.append(".p2align 6")
    a.lab("L_tile")
    a("s_add_u32 s%d, s%d, 4" % (sLt, sLt))
    a("s_cmp_lt_u32 s%d, s%d" % (sLt, sLend))
    a("s_cbranch_scc0 L_adv_slow")
    a.lab("L_adv_done")
    a("s_lshl_b32 s%d, s%d, 3" % (sT0, sLt))
    a("s_add_u32 s%d, s%d, s%d" % (sT0, sT0, sLbt))
    a("s_buffer_load_dwordx2 %s, %s, s%d" % (sp(sPG), srd(SRD_BT), sT0))
    a.lab("L_adv_skip")
    a("s_cmp_lg_u32 s%d, 0" % sCfirst)
    a("s_waitcnt vmcnt(24)")
    a("s_cbranch_scc1 L_qcopy")
    a.lab("L_qcopy_ret")
    for ks in range(8):
        a("ds_read_b128 %s, v%d" % (vr(vKF + 4 * ks, 4), vKA + ks))
    for ks in range(8):
        a("s_waitcnt lgkmcnt(%d)" % (7 - ks))
        c = "0" if ks == 0 else vr(vS, 16)
        a("v_mfma_f32_32x32x16_bf16 %s, %s, %s, %s" % (vr(vS, 16), vr(vKF + 4 * ks, 4), vr(vQ + 4 * ks, 4), c))
    a("s_cmp_lg_u32 s%d, 0" % sLnew)
    a("s_cbranch_scc1 L_qstage")
    a.lab("L_qstage_ret")
    calc_soffs()
    dma_tile_half(SRD_K, vDK, 0)
    a("s_lshl_b32 s%d, s%d, 5" % (sT0, sCt))
    a("s_sub_i32 s%d, s%d, s%d" % (sT0, sCcl, sT0))
    a("s_cmp_lt_i32 s%d, 32" % sT0)
    a("s_cbranch_scc1 L_mask")
    a.lab("L_mask_ret")
    a("v_max3_f32 v%d, v%d, v%d, v%d" % (vT0, vS, vS + 1, vS + 2))
    a("v_max3_f32 v%d, v%d, v%d, v%d" % (vT1, vS + 3, vS + 4, vS + 5))
    a("v_max3_f32 v%d, v%d, v%d, v%d" % (vT2, vS + 6, vS + 7, vS + 8))
    a("v_max3_f32 v%d, v%d, v%d, v%d" % (vT3, vS + 9, vS + 10, vS + 11))
    a("v_max3_f32 v%d, v%d, v%d, v%d" % (vT4, vS + 12, vS + 13, vS + 14))
    a("v_max3_f32 v%d, v%d, v%d, v%d" % (vT0, vT0, vT1, vS + 15))
    a("v_max3_f32 v%d, v%d, v%d, v%d" % (vT2, vT2, vT3, vT4))
    a("v_max_f32 v%d, v%d, v%d" % (vT0, vT0, vT2))
    a("v_mov_b32 v%d, v%d" % (vT1, vT0))
    a("s_nop 1")
    a("v_permlane32_swap_b32 v%d, v%d" % (vT0, vT1))
    a("s_nop 1")
    a("v_max_f32 v%d, v%d, v%d" % (vT0, vT0, vT1))
    a("v_mul_f32 v%d, s%d, v%d" % (vT0, sScale, vT0))
    a("v_max_f32 v%d, v%d, v%d" % (vT0, vT0, vM))
    a("v_sub_f32 v%d, v%d, v%d" % (vAl, vM, vT0))
    a("v_exp_f32 v%d, v%d" % (vAl, vAl))
    a("v_mov_b32 v%d, v%d" % (vM, vT0))
    for r in range(16):
        a("v_fma_f32 v%d, v%d, s%d, -v%d" % (vS + r, vS + r, sScale, vM))
    for r in range(16):
        a("v_exp_f32 v%d, v%d" % (vS + r, vS + r))
    a("s_waitcnt vmcnt(24)")
    for ks in range(2):
        for i in range(4):
            for jj in range(2):
                off = ks * 4096 + jj * 2048
                offs = " offset:%d" % off if off else ""
                a("ds_read_b64_tr_b16 %s, v%d%s" % (vr(vVF + (ks * 4 + i) * 4 + jj * 2, 2), vVA + i, offs))
    for r in range(8):
        a("v_cvt_pk_bf16_f32 v%d, v%d, v%d" % (vP + r, vS + 2 * r, vS + 2 * r + 1))
    a("v_mul_f32 v%d, v%d, v%d" % (vL, vL, vAl))
    a("v_add_f32 v%d, v%d, v%d" % (vT0, vS, vS + 1))
    a("v_add_f32 v%d, v%d, v%d" % (vT1, vS + 2, vS + 3))
    for r in range(4, 16, 2):
        a("v_add_f32 v%d, v%d, v%d" % (vT0, vT0, vS + r))
        a("v_add_f32 v%d, v%d, v%d" % (vT1, vT1, vS + r + 1))
    a("v_add_f32 v%d, v%d, v%d" % (vT0, vT0, vT1))
    a("v_add_f32 v%d, v%d, v%d" % (vL, vL, vT0))
    for i in range(64):
        a("v_mul_f32 v%d, v%d, v%d" % (vO + i, vO + i, vAl))
    a("s_nop 0")
    n = 0
    for ks in range(2):
        for i in range(4):
            n += 1
            a("s_waitcnt lgkmcnt(%d)" % (16 - 2 * n))
            a("v_mfma_f32_32x32x16_bf16 %s, %s, %s, %s" % (
                vr(vO + 16 * i, 16), vr(vVF + (ks * 4 + i) * 4, 4), vr(vP + 4 * ks, 4), vr(vO + 16 * i, 16)))
    dma_tile_half(SRD_V, vDV, 8192)
    a("s_xor_b32 s%d, s%d, 0x4000" % (sSlot, sSlot))
    for i in range(8):
        a("v_xor_b32 v%d, 0x4000, v%d" % (vKA + i, vKA + i))
    for i in range(4):
        a("v_xor_b32 v%d, 0x4000, v%d" % (vVA + i, vVA + i))
    a("s_or_b32 s%d, s%d, s%d" % (sT0, sPubCnt, sAtmCnt))
    a("s_cbranch_scc1 L_hk")
    a.lab("L_hk_ret")
    a("s_add_u32 s%d, s%d, 4" % (sCt, sCt))
    a("s_cmp_lt_u32 s%d, s%d" % (sCt, sCend))
    a("s_cbranch_scc1 L_tile")

    a.lab("L_seg_end")
    a("s_cmp_lg_u32 s%d, 0" % sCphase)
    a("s_cbranch_scc1 L_reduce")
    a("s_cmp_eq_u32 s%d, 0" % sHad)
    a("s_cbranch_scc1 L_next_seg")
    a("s_nop 7")
    for i in range(64):
        a("v_accvgpr_write_b32 a%d, v%d" % (aO + i, vO + i))
    a("v_accvgpr_write_b32 a%d, v%d" % (aM, vM))
    a("v_accvgpr_write_b32 a%d, v%d" % (aL, vL))
    a.lab("L_next_seg")
    a("s_sub_u32 s%d, s%d, s%d" % (sT2, sCt, sCend))
    next_bit(CMASK, vSEG, sCe, sT1, "L_cs_none")
    a("s_mov_b32 s%d, 1" % sCphase)
    a("s_and_b32 s%d, s%d, 255" % (sClo, sT1))
    a("s_lshr_b32 s%d, s%d, 8" % (sCend, sT1))
    a("s_add_u32 s%d, s%d, s%d" % (sCt, sClo, sT2))
    a("s_and_b32 s%d, s%d, 15" % (sT0, sCe))
    a("v_readlane_b32 s%d, v%d, s%d" % (sCcl, vCl, sT0))
    a("v_readlane_b32 s%d, v%d, s%d" % (sCT, vT, sT0))
    a("s_mov_b32 s%d, 1" % sCfirst)
    init_state()
    a("s_branch L_seg_go")
    a.lab("L_cs_none")
    a("s_mov_b32 s%d, 2" % sCphase)
    a("s_add_u32 s%d, s%d, 8" % (sCt, sT2))
    a("s_mov_b32 s%d, s%d" % (sCend, sOwn))
    a("s_mov_b32 s%d, s%d" % (sCe, sE))
    a("s_mov_b32 s%d, 0" % sClo)
    a("s_mov_b32 s%d, s%d" % (sCcl, sClown))
    a("s_mov_b32 s%d, s%d" % (sCT, sTown))
    a("s_mov_b32 s%d, s%d" % (sCfirst, sHad))
    a("s_cmp_eq_u32 s%d, 0" % sHad)
    a("s_cbranch_scc1 L_seg_go")
    for i in range(64):
        a("v_accvgpr_read_b32 v%d, a%d" % (vO + i, aO + i))
    a("v_accvgpr_read_b32 v%d, a%d" % (vM, aM))
    a("v_accvgpr_read_b32 v%d, a%d" % (vL, aL))
    a.lab("L_seg_go")
    a("s_cmp_lt_u32 s%d, s%d" % (sCt, sCend))
    a("s_cbranch_scc1 L_tile")
    a("s_branch L_seg_end")

    a.lab("L_reduce")
    a("s_mov_b32 s%d, 1" % sRet)
    a("s_branch L_hk_flush")
    a.lab("L_flush_ret1")
    a("v_mov_b32 v%d, v%d" % (vT1, vL))
    a("s_nop 1")
    a("v_permlane32_swap_b32 v%d, v%d" % (vL, vT1))
    a("s_nop 1")
    a("v_add_f32 v%d, v%d, v%d" % (vL, vL, vT1))
    a("ds_write_b64 v%d, %s" % (vStW, vr(vM, 2)))
    a("s_cmp_lg_u32 s%d, 0" % sW)
    a("s_cbranch_scc1 L_nopoll")
    a("s_cmp_lg_u32 s%d, 2" % sCphase)
    a("s_cbranch_scc1 L_nopoll")
    a("s_waitcnt vmcnt(0)")
    a("ds_write_b32 v%d, v%d offset:4" % (vMisc, vPoll))
    a.lab("L_nopoll")
    a("s_waitcnt lgkmcnt(0)")
    a("s_barrier")
    vSt = vKF
    for w in range(4):
        off = " offset:%d" % (w * 256) if w else ""
        a("ds_read_b64 %s, v%d%s" % (vr(vSt + 2 * w, 2), vStR, off))
    a("ds_read_b32 v%d, v%d offset:4" % (vT4, vMisc))
    a("s_waitcnt lgkmcnt(0)")
    a("v_max3_f32 v%d, v%d, v%d, v%d" % (vBigM, vSt, vSt + 2, vSt + 4))
    a("v_max_f32 v%d, v%d, v%d" % (vBigM, vBigM, vSt + 6))
    a("v_sub_f32 v%d, v%d, v%d" % (vF, vM, vBigM))
    a("v_exp_f32 v%d, v%d" % (vF, vF))
    for w in range(4):
        a("v_sub_f32 v%d, v%d, v%d" % (vSt + 2 * w, vSt + 2 * w, vBigM))
    for w in range(4):
        a("v_exp_f32 v%d, v%d" % (vSt + 2 * w, vSt + 2 * w))
    a("v_readfirstlane_b32 s%d, v%d" % (sT5, vT4))
    a("v_mul_f32 v%d, v%d, v%d" % (vBigL, vSt, vSt + 1))
    for w in range(1, 4):
        a("v_fmac_f32 v%d, v%d, v%d" % (vBigL, vSt + 2 * w, vSt + 2 * w + 1))
    for i in range(64):
        a("v_mul_f32 v%d, v%d, v%d" % (vO + i, vO + i, vF))
    for r in range(1, 4):
        a("s_add_u32 s%d, s%d, %d" % (sT0, sW, r))
        a("s_and_b32 s%d, s%d, 3" % (sT0, sT0))
        a("s_lshl_b32 s%d, s%d, 12" % (sT0, sT0))
        a("s_add_u32 s%d, s%d, %d" % (sT0, sT0, BUF0))
        a("v_add_u32 v%d, s%d, v%d" % (vT0, sT0, vLane16))
        for k in range(4):
            off = " offset:%d" % (k * 1024) if k else ""
            a("ds_write_b128 v%d, %s%s" % (vT0, vr(vO + 16 * r + 4 * k, 4), off))
        a("s_waitcnt lgkmcnt(0)")
        a("s_barrier")
        for k in range(4):
            off = " offset:%d" % (k * 1024) if k else ""
            a("ds_read_b128 %s, v%d%s" % (vr(vLd + 4 * k, 4), vXr, off))
        a("s_waitcnt lgkmcnt(0)")
        if r < 3:
            a("s_barrier")
        for i in range(16):
            a("v_add_f32 v%d, v%d, v%d" % (vO + i, vO + i, vLd + i))
    a("s_cmp_eq_u32 s%d, 1" % sCphase)
    a("s_cbranch_scc1 L_publish")
    a("s_cmp_eq_u32 s%d, 0" % sLown)
    a("s_cbranch_scc1 L_out_direct")
    if cfg.force_slow:
        a("s_branch L_publish")
    a("s_and_b32 s%d, s%d, 3" % (sT0, sE))
    a("s_lshl_b32 s%d, s%d, 3" % (sT0, sT0))
    a("s_lshr_b32 s%d, s%d, s%d" % (sT5, sT5, sT0))
    a("s_and_b32 s%d, s%d, 255" % (sT5, sT5))
    a("s_cmp_lg_u32 s%d, s%d" % (sT5, sLown))
    a("s_cbranch_scc1 L_publish")
    enum_helpers(sE)
    a.lab("L_pa_loop")
    next_bit(EMASK, vELo, sT2, sT3, "L_out_direct")
    fold(vO, vBigM, vBigL, sE, sT3, sW)
    a("s_branch L_pa_loop")
    a.lab("L_out_direct")
    store_out(vO, vBigL, sE, sW)
    a.lab("L_finish")
    if cfg.diag:
        a("s_waitcnt vmcnt(0)")
        stamp(2)
    a.lab("L_exit")
    a("s_endpgm")

    a.lab("L_publish")
    a("s_lshl_b32 s%d, s%d, 7" % (sT0, sCe))
    a("s_add_u32 s%d, s%d, s%d" % (sT0, sT0, sClo))
    a("s_mul_i32 s%d, s%d, %d" % (sT0, sT0, RECSZ))
    a("s_lshl_b32 s%d, s%d, 12" % (sT1, sW))
    a("s_add_u32 s%d, s%d, s%d" % (sT1, sT1, sT0))
    for k in range(4):
        off = " offset:%d" % (k * 1024) if k else ""
        a("buffer_store_dwordx4 %s, v%d, %s, s%d offen%s sc1" % (vr(vO + 4 * k, 4), vLane16, srd(SRD_WS), sT1, off))
    a("s_cmp_lg_u32 s%d, 0" % sW)
    a("s_cbranch_scc1 L_pub_nostat")
    a("v_cmp_lt_u32 vcc, 31, v%d" % vLane)
    a("v_lshlrev_b32 v%d, 2, v%d" % (vT1, vLane))
    a("s_add_u32 s%d, s%d, 16384" % (sT0, sT0))
    a("v_cndmask_b32 v%d, v%d, v%d, vcc" % (vT0, vBigM, vBigL))
    a("buffer_store_dword v%d, v%d, %s, s%d offen sc1" % (vT0, vT1, srd(SRD_WS), sT0))
    a.lab("L_pub_nostat")
    a("s_mov_b32 s%d, 2" % sPubCnt)
    a("s_mov_b32 s%d, s%d" % (sPubE, sCe))
    a("s_sub_u32 s%d, s%d, s%d" % (sPubN, sCend, sClo))
    a("s_mov_b32 s%d, s%d" % (sPubT, sCT))
    a("s_cmp_eq_u32 s%d, 1" % sCphase)
    a("s_cbranch_scc1 L_next_seg")
    a("s_mov_b32 s%d, 2" % sRet)
    a("s_branch L_hk_flush")

    a.lab("L_hk")
    a("s_mov_b32 s%d, 0" % sRet)
    a("s_cmp_eq_u32 s%d, 0" % sAtmCnt)
    a("s_cbranch_scc1 L_hk_pub")
    a("s_sub_u32 s%d, s%d, 1" % (sAtmCnt, sAtmCnt))
    a("s_cmp_eq_u32 s%d, 0" % sAtmCnt)
    a("s_cbranch_scc1 L_check")
    a("s_branch L_hk_ret")
    a.lab("L_hk_pub")
    a("s_sub_u32 s%d, s%d, 1" % (sPubCnt, sPubCnt))
    a("s_cmp_eq_u32 s%d, 0" % sPubCnt)
    a("s_cbranch_scc1 L_signal")
    a("s_branch L_hk_ret")

    a.lab("L_hk_flush")
    a("s_cmp_eq_u32 s%d, 0" % sPubCnt)
    a("s_cbranch_scc1 L_flush_atm")
    a("s_waitcnt vmcnt(0)")
    a("s_mov_b32 s%d, 0" % sPubCnt)
    a.lab("L_signal")
    a("v_mov_b32 v%d, 1" % vT0)
    a("s_mov_b64 exec, 1")
    a("ds_add_rtn_u32 v%d, v%d, v%d" % (vT1, vMisc, vT0))
    a("s_mov_b64 exec, -1")
    a("s_waitcnt lgkmcnt(0)")
    a("v_readfirstlane_b32 s%d, v%d" % (sT0, vT1))
    a("s_and_b32 s%d, s%d, 3" % (sT0, sT0))
    a("s_cmp_lg_u32 s%d, 3" % sT0)
    a("s_cbranch_scc1 L_signal_done")
    a("s_and_b32 s%d, s%d, 3" % (sT0, sPubE))
    a("s_lshl_b32 s%d, s%d, 3" % (sT0, sT0))
    a("s_lshl_b32 s%d, s%d, s%d" % (sT0, sPubN, sT0))
    a("v_mov_b32 v%d, s%d" % (vAtm, sT0))
    a("s_and_b32 s%d, s%d, 0xfc" % (sT1, sPubE))
    a("s_mov_b64 exec, 1")
    a("buffer_atomic_add v%d, off, %s, s%d sc0" % (vAtm, srd(SRD_DBG), sT1))
    a("s_mov_b64 exec, -1")
    a("s_mov_b32 s%d, 2" % sAtmCnt)
    a.lab("L_signal_done")
    a("s_cmp_eq_u32 s%d, 0" % sRet)
    a("s_cbranch_scc1 L_hk_ret")
    a.lab("L_flush_atm")
    a("s_cmp_eq_u32 s%d, 0" % sAtmCnt)
    a("s_cbranch_scc1 L_hk_return")
    a("s_waitcnt vmcnt(0)")
    a("s_mov_b32 s%d, 0" % sAtmCnt)
    a.lab("L_check")
    a("v_readfirstlane_b32 s%d, v%d" % (sT0, vAtm))
    a("s_and_b32 s%d, s%d, 3" % (sT1, sPubE))
    a("s_lshl_b32 s%d, s%d, 3" % (sT1, sT1))
    a("s_lshr_b32 s%d, s%d, s%d" % (sT0, sT0, sT1))
    a("s_and_b32 s%d, s%d, 255" % (sT0, sT0))
    a("s_add_u32 s%d, s%d, s%d" % (sT0, sT0, sPubN))
    a("s_cmp_lg_u32 s%d, s%d" % (sT0, sPubT))
    a("s_cbranch_scc1 L_hk_return")
    vAcc, vBM, vBL = vKF, vS + 8, vS + 9
    a("s_mov_b32 s%d, 0" % sPubN)
    a.lab("L_pb_dt")
    for i in range(16):
        a("v_mov_b32 v%d, 0" % (vAcc + i))
    a("v_mov_b32 v%d, %s" % (vBM, fbits(NEG_BIG)))
    a("v_mov_b32 v%d, 0" % vBL)
    enum_helpers(sPubE)
    a("s_mov_b32 s%d, 0" % sT3)
    a.lab("L_pb_loop")
    fold(vAcc, vBM, vBL, sPubE, sT3, sPubN)
    next_bit(EMASK, vELo, sT2, sT3, "L_pb_store")
    a("s_branch L_pb_loop")
    a.lab("L_pb_store")
    store_out(vAcc, vBL, sPubE, sPubN)
    a("s_add_u32 s%d, s%d, 1" % (sPubN, sPubN))
    a("s_cmp_lt_u32 s%d, 4" % sPubN)
    a("s_nop 1")
    a("s_cbranch_scc1 L_pb_dt")
    a.lab("L_hk_return")
    a("s_cmp_eq_u32 s%d, 0" % sRet)
    a("s_cbranch_scc1 L_hk_ret")
    a("s_cmp_eq_u32 s%d, 1" % sRet)
    a("s_cbranch_scc1 L_flush_ret1")
    a("s_branch L_finish")

    a.lab("L_adv_slow")
    a("s_sub_u32 s%d, s%d, s%d" % (sT2, sLt, sLend))
    a("s_cmp_eq_u32 s%d, 0" % sLphase)
    a("s_cbranch_scc1 L_adv_h")
    a("s_cmp_eq_u32 s%d, 2" % sLphase)
    a("s_cbranch_scc1 L_adv_skip")
    a("s_mov_b32 s%d, 2" % sLphase)
    a("s_mov_b32 s%d, 0x4000" % sPG)
    a("s_mov_b32 s%d, 0x4000" % (sPG + 1))
    a("s_mov_b32 s%d, 0" % sLnew)
    a("s_mov_b32 s%d, 0" % sLend)
    a("s_cmp_lg_u32 s%d, 0" % sW)
    a("s_cbranch_scc1 L_adv_skip")
    a("s_and_b32 s%d, s%d, 0xfc" % (sT1, sE))
    a("buffer_load_dword v%d, off, %s, s%d sc1" % (vPoll, srd(SRD_DBG), sT1))
    a("s_branch L_adv_skip")
    a.lab("L_adv_h")
    next_bit(LMASK, vSEG, sT0, sT1, "L_adv_none")
    a("s_and_b32 s%d, s%d, 255" % (sLt, sT1))
    a("s_add_u32 s%d, s%d, s%d" % (sLt, sLt, sT2))
    a("s_lshr_b32 s%d, s%d, 8" % (sLend, sT1))
    a("s_mov_b32 s%d, 1" % sLnew)
    a("s_branch L_adv_set")
    a.lab("L_adv_none")
    a("s_mov_b32 s%d, 1" % sLphase)
    a("s_add_u32 s%d, s%d, 8" % (sLt, sT2))
    a("s_mov_b32 s%d, s%d" % (sLend, sOwn))
    a("s_mov_b32 s%d, s%d" % (sLnew, sHad))
    a("s_mov_b32 s%d, s%d" % (sT0, sE))
    a.lab("L_adv_set")
    a("s_and_b32 s%d, s%d, 15" % (sT1, sT0))
    a("s_lshr_b32 s%d, s%d, 4" % (sT0, sT0))
    a("s_lshl_b32 s%d, s%d, 8" % (sLhoff, sT0))
    a("s_lshl_b32 s%d, s%d, 10" % (sLbt, sT1))
    a("s_lshl_b32 s%d, s%d, 17" % (sLq, sT1))
    a("s_lshl_b32 s%d, s%d, 13" % (sT0, sT0))
    a("s_add_u32 s%d, s%d, s%d" % (sLq, sLq, sT0))
    a("s_cmp_lt_u32 s%d, s%d" % (sLt, sLend))
    a("s_cbranch_scc1 L_adv_done")
    a("s_branch L_adv_slow")

    a.lab("L_qcopy")
    a("s_mov_b32 s%d, 0" % sCfirst)
    a("s_bitcmp1_b32 s%d, 14" % sSlot)
    a("s_cbranch_scc1 L_qcopy1")
    for i in range(32):
        a("v_accvgpr_read_b32 v%d, a%d" % (vQ + i, aQ0 + i))
    a("s_branch L_qcopy_ret")
    a.lab("L_qcopy1")
    for i in range(32):
        a("v_accvgpr_read_b32 v%d, a%d" % (vQ + i, aQ1 + i))
    a("s_branch L_qcopy_ret")

    a.lab("L_qstage")
    a("s_mov_b32 s%d, 0" % sLnew)
    a("s_bitcmp1_b32 s%d, 14" % sSlot)
    a("s_cbranch_scc1 L_qstage1")
    for base, lab in ((aQ0, None), (aQ1, "L_qstage1")):
        if lab:
            a.lab(lab)
        for ks in range(8):
            off = " offset:%d" % (ks * 32) if ks else ""
            a("buffer_load_dwordx4 %s, v%d, %s, s%d offen%s" % (ar(base + 4 * ks, 4), vQoff, srd(SRD_Q), sLq, off))
        a("s_branch L_qstage_ret")

    a.lab("L_mask")
    a("v_mov_b32 v%d, %s" % (vT0, fbits(MASKED_RAW)))
    for r in range(16):
        tok = 8 * (r // 4) + (r % 4)
        a("s_sub_i32 s%d, s%d, %d" % (sT1, sT0, tok))
        a("v_cmp_gt_i32 vcc, s%d, v%d" % (sT1, vTok))
        a("s_nop 1")
        a("v_cndmask_b32 v%d, v%d, v%d, vcc" % (vS + r, vT0, vS + r))
    a("s_branch L_mask_ret")

    a.l.append('.section .rodata,"a"')
    a.l.append(".p2align 6")
    a.l.append(".amdhsa_kernel %s_kernel" % NAME)
    a.l.append("  .amdhsa_next_free_vgpr 392")
    a.l.append("  .amdhsa_next_free_sgpr 102")
    a.l.append("  .amdhsa_accum_offset 256")
    a.l.append("  .amdhsa_group_segment_fixed_size 0")
    a.l.append("  .amdhsa_kernarg_size 64")
    a.l.append("  .amdhsa_user_sgpr_count 2")
    a.l.append("  .amdhsa_user_sgpr_kernarg_segment_ptr 1")
    a.l.append("  .amdhsa_system_sgpr_workgroup_id_x 1")
    a.l.append(".end_amdhsa_kernel")
    return "\n".join(a.l) + "\n"


if __name__ == "__main__":
    import argparse
    ap = argparse.ArgumentParser()
    ap.add_argument("-o", default="cdna_kernels/%s.s" % NAME)
    ap.add_argument("--diag", action="store_true")
    ap.add_argument("--force-slow", action="store_true")
    args = ap.parse_args()
    open(args.o, "w").write(build(Cfg(diag=args.diag, force_slow=args.force_slow)))
```
